```python
import torch

def _softmax(x, axis=-1):
    return torch.softmax(x, dim=axis)
def _gelu(x):
    return torch.nn.functional.gelu(x, approximate="tanh")
def _silu(x):
    return torch.nn.functional.silu(x)
def _sigmoid(x):
    return torch.sigmoid(x)
def _layernorm(x, axis=-1, eps=1e-5):
    m = x.mean(dim=axis, keepdim=True)
    v = x.var(dim=axis, keepdim=True, unbiased=False)
    return (x - m) / torch.sqrt(v + eps)
def _scatter_add(tgt, idx, src, axis=0):
    return tgt.clone().index_add_(axis, idx, src)
def _segment_sum(src, seg, n):
    out = torch.zeros((n,) + src.shape[1:], dtype=src.dtype)
    return out.index_add_(0, seg, src)
def _pad(x, pw):
    flat = tuple(v for pair in reversed(pw) for v in pair)
    return torch.nn.functional.pad(x, flat)

kernel_name = 'recurrent_scan__sliding_local_dilated__glu_gated_geglu__prompt'

def setup_inputs():

    _w = (lambda a: (lambda t: t.to(torch.bfloat16) if t.is_floating_point() else t)(torch.as_tensor(a)))
    def _A_setup():
        B, S, D = 1, 2048, 512
        return {
            "x": _w((lambda *s: torch.randn(*s, dtype=torch.bfloat16) * 0.05)(B, S, D)),
            "wqkv": _w((lambda *s: torch.randn(*s, dtype=torch.bfloat16) * 0.2)(D, 3 * D)),
            "wo": _w((lambda *s: torch.randn(*s, dtype=torch.bfloat16) * 0.2)(D, D)),
        }
    _A_in = _A_setup()

    def _B_setup():
        B, S, Dm, Df = 1, 2048, 512, 1792
        return {
            "x": _w((lambda *s: torch.randn(*s, dtype=torch.bfloat16) * 0.05)(B, S, Dm)),
            "w_gate": _w((lambda *s: torch.randn(*s, dtype=torch.bfloat16) * 0.1)(Dm, Df) * (Dm ** -0.5)),
            "w_up": _w((lambda *s: torch.randn(*s, dtype=torch.bfloat16) * 0.1)(Dm, Df) * (Dm ** -0.5)),
            "w_down": _w((lambda *s: torch.randn(*s, dtype=torch.bfloat16) * 0.1)(Df, Dm) * (Df ** -0.5)),
        }
    _B_in = _B_setup()

    return {
        "A_x": _A_in["x"],
        "A_wqkv": _A_in["wqkv"],
        "A_wo": _A_in["wo"],
        "B_x": _B_in["x"],
        "B_w_gate": _B_in["w_gate"],
        "B_w_up": _B_in["w_up"],
        "B_w_down": _B_in["w_down"],
    }

def reference(A_x, A_wqkv, A_wo, B_x, B_w_gate, B_w_up, B_w_down):
    def _A_ref(x, wqkv, wo):
        B, S, D = x.shape
        H = 32; Dh = D // H
        W, dil = 8, 2
        qkv = (lambda x, *d: x.permute(*d))((x @ wqkv).reshape(B, S, 3, H, Dh), 2, 0, 3, 1, 4)
        q, k, v = qkv[0], qkv[1], qkv[2]
        scale = Dh ** -0.5
        pos = torch.arange(S)
        off = torch.arange(W) * dil
        idx = pos[:, None] - off[None, :]
        mask = idx >= 0
        idx_c = torch.where(mask, idx, 0).reshape(-1)
        kg = k[:, :, idx_c, :].reshape(B, H, S, W, Dh)
        vg = v[:, :, idx_c, :].reshape(B, H, S, W, Dh)
        logits = torch.einsum("bhsd,bhswd->bhsw", q, kg) * scale
        logits = torch.where(mask[None, None, :, :], logits, -1e9)
        attn = _softmax(logits, axis=-1)
        o = torch.einsum("bhsw,bhswd->bhsd", attn, vg)
        return (lambda x, *d: x.permute(*d))(o, 0, 2, 1, 3).reshape(B, S, D) @ wo

    def _B_ref(x, w_gate, w_up, w_down):
        g = torch.einsum("bsd,df->bsf", x, w_gate)
        u = torch.einsum("bsd,df->bsf", x, w_up)
        h = _gelu(g) * u
        return torch.einsum("bsf,fd->bsd", h, w_down)

    x = A_x
    xn = _layernorm(x, axis=-1)
    s = _A_ref(xn, A_wqkv, A_wo)
    g = _silu(_B_ref(xn, B_w_gate, B_w_up, B_w_down))
    return x + s * g
```

```python
import re, subprocess, os

TRANS = ('v_exp_f32', 'v_log_f32', 'v_rcp_f32', 'v_rsq_f32', 'v_sqrt_f32', 'v_sin_f32', 'v_cos_f32')
FLEX = set('''v_mov_b32 v_add_f32 v_sub_f32 v_subrev_f32 v_mul_f32 v_max_f32 v_min_f32 v_add_u32 v_sub_u32 v_subrev_u32
v_and_b32 v_or_b32 v_xor_b32 v_lshlrev_b32 v_lshrrev_b32 v_ashrrev_i32 v_exp_f32 v_rcp_f32 v_rsq_f32 v_log_f32 v_sqrt_f32
v_fmac_f32 v_mul_u32_u24 v_cvt_f32_u32 v_cvt_u32_f32 v_max_u32 v_min_u32 v_not_b32'''.split())

def parse_regs(tok):
    tok = tok.strip()
    neg = tok.startswith('-')
    if neg: tok = tok[1:]
    if tok.startswith('abs(') and tok.endswith(')'): tok = tok[4:-1]
    if tok.startswith('|') and tok.endswith('|'): tok = tok[1:-1]
    m = re.fullmatch(r'([vas])(\d+)', tok)
    if m: return [(m.group(1), int(m.group(2)))]
    m = re.fullmatch(r'([vas])\[(\d+):(\d+)\]', tok)
    if m: return [(m.group(1), i) for i in range(int(m.group(2)), int(m.group(3)) + 1)]
    if tok == 'vcc': return [('s', 'vcc')]
    if tok == 'exec': return [('s', 'exec')]
    if tok == 'm0': return [('s', 'm0')]
    if tok == 'scc': return [('s', 'scc')]
    return []

class Ins:
    def __init__(self, txt, tag=None, comment=None):
        self.txt = txt.strip()
        self.tag = tag
        self.comment = comment
        self.size = None
        self.enc = None
        self.is_label = self.txt.endswith(':')
        self.is_dir = self.txt.startswith('.')
        self.rd = set(); self.wr = set()
        self.kind = 'other'
        self.flex = False
        self.wait = None
        if self.is_label or self.is_dir:
            self.kind = 'label' if self.is_label else 'dir'
            return
        self._parse()

    def _parse(self):
        t = self.txt
        sp = t.split(None, 1)
        op = sp[0]; self.op = op
        rest = sp[1] if len(sp) > 1 else ''
        ops = []; cur = ''; depth = 0
        for ch in rest:
            if ch in '[(': depth += 1
            if ch in '])': depth -= 1
            if ch == ',' and depth == 0: ops.append(cur.strip()); cur = ''
            else: cur += ch
        if cur.strip(): ops.append(cur.strip())
        mods = ''
        if ops:
            last = ops[-1].split()
            ops[-1] = last[0]; mods = ' '.join(last[1:])
        self.ops = ops; self.mods = mods
        R = lambda k: parse_regs(ops[k]) if k < len(ops) else []
        allr = lambda a: sum([R(k) for k in range(a, len(ops))], [])
        base = re.sub(r'_(e32|e64|dpp|sdwa)$', '', op)
        self.base = base
        if op.startswith('v_mfma'):
            self.kind = 'mfma'; self.wr = set(R(0)); self.rd = set(R(1) + R(2) + R(3))
            self.srcA = set(R(1)); self.srcB = set(R(2)); self.srcC = set(R(3)); self.D = set(R(0))
            self.passes = 8 if '32x32' in op else 4
        elif op.startswith('v_'):
            self.kind = 'trans' if base in TRANS else 'valu'
            if base.startswith('v_cmp'):
                self.wr = set(R(0)); self.rd = set(allr(1))
                if base.startswith('v_cmpx'): self.wr.add(('s', 'exec'))
            elif base in ('v_fmac_f32', 'v_dot2c_f32_bf16', 'v_pk_fmac_f16'):
                self.wr = set(R(0)); self.rd = set(allr(0))
            elif base.startswith('v_permlane') and 'swap' in base:
                self.wr = set(allr(0)); self.rd = set(allr(0))
            elif base in ('v_add_co_u32', 'v_sub_co_u32', 'v_addc_co_u32', 'v_subb_co_u32'):
                self.wr = set(R(0) + R(1)); self.rd = set(allr(2))
            elif base == 'v_cndmask_b32':
                self.wr = set(R(0)); self.rd = set(allr(1))
                if len(ops) == 3: self.rd.add(('s', 'vcc'))
            elif base == 'v_nop':
                pass
            else:
                self.wr = set(R(0)); self.rd = set(allr(1))
            self.is_dot = base.startswith('v_dot')
            self.is_dpp = ('row_' in mods or 'quad_perm' in mods or op.endswith('_dpp'))
            if base in FLEX and op == base and not self.is_dpp and 'op_sel' not in mods and 'clamp' not in mods and 'mul:' not in mods and 'div:' not in mods:
                srcs = ops[1:]
                has_mod = any(s.startswith('-') and parse_regs(s) or 'abs(' in s or s.startswith('|') for s in srcs)
                lit = any(self._is_literal(s) for s in srcs)
                e32ok = not has_mod
                if len(srcs) == 2 and not re.fullmatch(r'v\d+', srcs[1]): e32ok = False
                if any(r[0] == 'a' for r in self.rd | self.wr): e32ok = False
                e64ok = not lit
                if e32ok and e64ok: self.flex = True
                elif e32ok: self.enc = '_e32'
                elif e64ok: self.enc = '_e64'
                else: raise ValueError('no encoding for ' + t)
        elif op.startswith('ds_'):
            self.kind = 'ds'
            if op.startswith('ds_read') or op.startswith('ds_bpermute') or op.startswith('ds_permute') or op.startswith('ds_swizzle'):
                self.wr = set(R(0)); self.rd = set(allr(1))
            else:
                self.rd = set(allr(0))
        elif op.startswith('buffer_') or op.startswith('global_'):
            self.kind = 'vmem'
            self.is_lds = (' lds' in (' ' + mods + ' ')) or 'load_lds' in op
            if op.startswith('buffer_wbl2') or op.startswith('buffer_inv'):
                pass
            elif 'load' in op and not self.is_lds:
                self.wr = set(R(0)); self.rd = set(allr(1))
            elif 'atomic' in op and 'sc0' in mods:
                self.wr = set(R(0)); self.rd = set(allr(1))
            else:
                self.rd = set(allr(0))
            if self.is_lds: self.rd.add(('s', 'm0'))
            self.is_store = 'store' in op or 'atomic' in op
            self.wide_store = 'store_dwordx4' in op or 'store_dwordx3' in op
            self.store_data = set()
            if 'store' in op:
                self.store_data = set(R(0)) if op.startswith('buffer_') else set(R(1))
        elif op.startswith('s_'):
            if op in ('s_waitcnt',): self.kind = 'wait'
            elif op == 's_nop': self.kind = 'nop'
            elif op == 's_barrier': self.kind = 'barrier'
            elif op.startswith('s_cbranch') or op in ('s_branch', 's_setpc_b64', 's_endpgm'): self.kind = 'branch'
            elif op.startswith('s_load') or op.startswith('s_buffer_load') or op in ('s_memtime', 's_memrealtime'):
                self.kind = 'smem'; self.wr = set(R(0)); self.rd = set(allr(1))
            elif op.startswith('s_cmp'):
                self.kind = 'salu'; self.rd = set(allr(0)); self.wr = {('s', 'scc')}
            elif op in ('s_sleep', 's_setprio'):
                self.kind = 'salu'
            else:
                self.kind = 'salu'; self.wr = set(R(0)); self.rd = set(allr(1))
                if op.startswith('s_cselect') or op.startswith('s_addc') or op.startswith('s_subb'): self.rd.add(('s', 'scc'))
                if op.startswith('s_and_saveexec') or op.startswith('s_or_saveexec'): self.wr.add(('s', 'exec')); self.rd.add(('s', 'exec'))
                if op == 's_getpc_b64': self.rd = set()
        else:
            raise ValueError('unknown instruction: ' + t)

    @staticmethod
    def _is_literal(s):
        s = s.strip()
        if parse_regs(s): return False
        if s in ('0.5', '-0.5', '1.0', '-1.0', '2.0', '-2.0', '4.0', '-4.0', '0.15915494', 'off'): return False
        try:
            v = int(s, 0)
            if -16 <= v <= 64: return False
            if v in (0x3f800000, 0xbf800000, 0x3f000000, 0xbf000000, 0x40000000, 0xc0000000, 0x40800000, 0xc0800000, 0x3e22f983): return False
            return True
        except ValueError:
            return True

    def states(self):
        if self.kind == 'nop': return int(self.ops[0]) + 1
        if self.kind in ('label', 'dir'): return 0
        return 1

    def cost(self):
        k = self.kind
        if k == 'mfma': return 8
        if k == 'trans': return 8
        if k == 'ds':
            if 'b128' in self.op: return 8
            return 4
        if k == 'vmem': return 6
        if k in ('label', 'dir'): return 0
        if k == 'nop': return 4 * (int(self.ops[0]) + 1)
        if k == 'valu' and self.base.startswith('v_permlane'): return 8
        return 4

    def render(self):
        if self.is_label or self.is_dir: return self.txt
        t = self.txt
        if self.enc:
            sp = t.split(None, 1)
            t = sp[0] + self.enc + (' ' + sp[1] if len(sp) > 1 else '')
        return '    ' + t + (('    ; ' + self.comment) if self.comment else '')


class Prog:
    def __init__(self):
        self.ins = []
    def I(self, txt, tag=None, c=None):
        i = Ins(txt, tag=tag, comment=c); self.ins.append(i); return i
    def L(self, name): self.ins.append(Ins(name + ':'))
    def D(self, txt): self.ins.append(Ins(txt))
    def add(self, x):
        if isinstance(x, Ins): self.ins.append(x)
        elif isinstance(x, str): self.I(x)
        else:
            for y in x: self.add(y)
    def waitvm(self, tag, c=None):
        i = Ins('s_waitcnt vmcnt(0)', comment=c); i.wait = ('vm', tag); self.ins.append(i); return i
    def waitlg(self, tag, c=None):
        i = Ins('s_waitcnt lgkmcnt(0)', comment=c); i.wait = ('lg', tag); self.ins.append(i); return i

def mk(txt, tag=None, c=None): return Ins(txt, tag=tag, comment=c)
def mkwaitvm(tag):
    i = Ins('s_waitcnt vmcnt(0)'); i.wait = ('vm', tag); return i
def mkwaitlg(tag):
    i = Ins('s_waitcnt lgkmcnt(0)'); i.wait = ('lg', tag); return i


def resolve_waits(seq):
    vm = []; lg = []
    seen_vm = set(); seen_lg = set()
    for i in seq:
        if i.kind == 'vmem':
            vm.append(i.tag)
            if i.tag is not None: seen_vm.add(i.tag)
        elif i.kind == 'ds':
            lg.append(i.tag)
            if i.tag is not None: seen_lg.add(i.tag)
        elif i.kind == 'smem':
            lg.append('SMEM')
        elif i.kind == 'wait':
            if i.wait is not None:
                cls, tag = i.wait
                q = vm if cls == 'vm' else lg
                seen = seen_vm if cls == 'vm' else seen_lg
                if tag not in seen:
                    raise ValueError('wait on unknown tag %r' % (tag,))
                idx = [k for k, t in enumerate(q) if t == tag]
                if idx: n = len(q) - 1 - idx[-1]
                else: n = None
                if cls == 'lg' and 'SMEM' in q: n = 0
                lim = 63 if cls == 'vm' else 15
                if n is None: n = lim
                n = min(n, lim)
                prev = getattr(i, 'count', None)
                if prev is not None: n = min(n, prev)
                i.count = n
                i.txt = 's_waitcnt %s(%d)' % ('vmcnt' if cls == 'vm' else 'lgkmcnt', n)
                i.ops = [i.txt.split()[1]]
                del q[:max(0, len(q) - n)]
            else:
                m = re.search(r'vmcnt\((\d+)\)', i.txt)
                if m:
                    n = int(m.group(1)); del vm[:max(0, len(vm) - n)]
                m = re.search(r'lgkmcnt\((\d+)\)', i.txt)
                if m:
                    n = int(m.group(1)); del lg[:max(0, len(lg) - n)]


def check_path(seq, name=''):
    errs = []
    A = [i for i in seq if i.kind not in ('label', 'dir')]
    pos = []; s = 0
    for i in A:
        pos.append(s); s += i.states()
    def dist(a, b): return pos[b] - pos[a] - A[a].states()
    last_w = {}
    WIN = 24
    n = len(A)
    for b in range(n):
        ib = A[b]
        a = b - 1
        while a >= 0 and dist(a, b) < 20:
            ia = A[a]
            d = dist(a, b)
            def err(rule, need):
                if d < need: errs.append('%s: %s needs %d states, has %d: [%d] %s -> [%d] %s' % (name, rule, need, d, a, ia.txt, b, ib.txt))
            wa = ia.wr
            if ia.kind == 'mfma':
                full = 12 if ia.passes == 8 else 8
                ovl = 10 if ia.passes == 8 else 6
                war = 7 if ia.passes == 8 else 3
                if ib.kind == 'mfma':
                    if ia.D & (ib.srcA | ib.srcB): err('mfma D->A/B', full)
                    if ia.D & ib.srcC and ia.D != ib.srcC: err('mfma D->C overlap', ovl)
                    if ia.D & ib.D and not (ia.D == ib.D and ib.srcC == ib.D) and not (ia.D & ib.srcC):
                        err('mfma D->D waw', ovl)
                elif ib.kind in ('valu', 'trans'):
                    if ia.D & (ib.rd | ib.wr): err('mfma D->valu', full)
                    if ia.srcC & ib.wr: err('mfma C war', war)
                elif ib.kind in ('vmem', 'ds'):
                    if ia.D & (ib.rd | ib.wr): err('mfma D->mem', full)
            if ia.kind in ('valu', 'trans'):
                vw = {r for r in wa if r[0] in 'va'}
                sw = {r for r in wa if r[0] == 's'}
                if ib.kind == 'mfma' and vw & ib.rd: err('valu->mfma', 2)
                if ia.kind == 'trans' and ib.kind == 'valu' and vw & ib.rd: err('trans->valu', 1)
                if getattr(ia, 'is_dot', False) and ib.kind in ('valu', 'trans', 'vmem', 'ds', 'mfma'):
                    if vw & (ib.rd | ib.wr):
                        same_c = getattr(ib, 'is_dot', False) and ib.base == ia.base and not (vw & set(sum([parse_regs(o) for o in ib.ops[1:3]], [])))
                        if not same_c: err('dot->other', 3)
                if ib.kind in ('valu', 'trans'):
                    if ib.base.startswith('v_permlane') and vw & ib.rd: err('valu->permlane', 2)
                    if ib.base in ('v_readfirstlane_b32', 'v_readlane_b32') and vw & ib.rd: err('valu->readlane', 1)
                    if getattr(ib, 'is_dpp', False) and vw & ib.rd: err('valu->dpp', 2)
                    if sw & ib.rd: err('valu sgpr->valu', 2)
                if ib.kind == 'vmem' and sw & ib.rd: err('valu sgpr->vmem', 5)
                if ib.kind in ('salu', 'branch') and sw & ib.rd: err('valu sgpr->salu(pad)', 2)
            if ia.kind == 'salu' and ('s', 'm0') in ia.wr and ib.kind == 'vmem' and getattr(ib, 'is_lds', False): err('m0->dma', 1)
            if ia.kind == 'vmem' and getattr(ia, 'wide_store', False):
                if ib.kind in ('valu', 'trans') and ia.store_data & ib.wr: err('store data war', 2)
                elif ib.kind in ('ds', 'vmem', 'mfma') and ia.store_data & ib.wr: err('store data war', 1)
            a -= 1
    vm = []; lg = []
    for k, i in enumerate(A):
        pend = set()
        for (kk, w) in vm: pend |= w
        for (kk, w) in lg: pend |= w
        touch = (i.rd | i.wr)
        if i.kind == 'wait':
            m = re.search(r'vmcnt\((\d+)\)', i.txt)
            if m: del vm[:max(0, len(vm) - int(m.group(1)))]
            m = re.search(r'lgkmcnt\((\d+)\)', i.txt)
            if m: del lg[:max(0, len(lg) - int(m.group(1)))]
            continue
        hit = pend & touch
        if hit:
            ok = False
            if i.kind == 'vmem' and not (i.rd & pend) and all(any(r in w for (_, w) in vm) for r in hit): ok = True
            if i.kind == 'ds' and not (i.rd & pend) and all(any(r in w for (_, w) in lg) for r in hit): ok = True
            if not ok: errs.append('%s: use of pending load regs %s at [%d] %s' % (name, sorted(hit)[:4], k, i.txt))
        if i.kind == 'vmem': vm.append((k, set(i.wr)))
        elif i.kind == 'ds': lg.append((k, set(i.wr)))
        elif i.kind == 'smem': lg.append((k, set(i.wr)))
    return errs


CLANG = 'clang'
OBJDUMP = 'llvm-objdump'

def measure_sizes(ins, header, footer, tmp='dsl_tmp'):
    for i in ins:
        if i.flex: i.enc = '_e64'
    txt = header + '\n'.join(i.render() for i in ins) + '\n' + footer
    open(tmp + '.s', 'w').write(txt)
    r = subprocess.run([CLANG, '-x', 'assembler', '-target', 'amdgcn-amd-amdhsa', '-mcpu=gfx950', '-c', tmp + '.s', '-o', tmp + '.o'], capture_output=True, text=True)
    if r.returncode != 0:
        print(r.stderr[:6000]); raise SystemExit('assembly failed')
    d = subprocess.run([OBJDUMP, '-d', '--mcpu=gfx950', tmp + '.o'], capture_output=True, text=True).stdout
    addrs = []
    for line in d.splitlines():
        m = re.search(r'// ([0-9A-F]{12}): ((?:[0-9A-F]{8} ?)+)', line)
        if m: addrs.append((int(m.group(1), 16), len(m.group(2).split()) * 4))
    real = [i for i in ins if i.kind not in ('label', 'dir')]
    return real, addrs

def align_pass(ins, header, footer, nop_ok=True):
    real, addrs = measure_sizes(ins, header, footer)
    has_align = any(i.kind == 'dir' and i.txt.startswith('.p2align') for i in ins)
    if len(real) != len(addrs):
        tmp_ins = [i for i in ins if not (i.kind == 'dir' and i.txt.startswith('.p2align'))]
        real, addrs = measure_sizes(tmp_ins, header, footer)
        assert len(real) == len(addrs), (len(real), len(addrs))
    for i, (a, sz) in zip(real, addrs): i.size = sz
    n = len(ins)
    INF = 1e18
    dp = [[0.0, 0.0] for _ in range(n + 1)]
    ch = [[None, None] for _ in range(n)]
    for k in range(n - 1, -1, -1):
        i = ins[k]
        for par in (0, 1):
            best = INF; bc = None
            if i.kind == 'dir' and i.txt.startswith('.p2align'):
                best = dp[k + 1][0]; bc = ('keep',)
            elif i.kind in ('label', 'dir'):
                best = dp[k + 1][par]; bc = ('keep',)
            else:
                opts = []
                if i.flex: opts = [(4, '_e32'), (8, '_e64')]
                else: opts = [(i.size, i.enc)]
                for sz, enc in opts:
                    c = 0.0
                    if sz == 8 and par == 1: c = 1.3
                    np_ = par ^ (1 if sz % 8 == 4 else 0)
                    tot = c + dp[k + 1][np_]
                    if tot < best - 1e-9: best = tot; bc = ('enc', enc)
                    if nop_ok and par == 1 and sz == 8:
                        prev = ins[k - 1] if k > 0 else None
                        cn = 0.6 if (prev is not None and prev.kind == 'mfma') else 4.0
                        tot = cn + dp[k + 1][0]
                        if tot < best - 1e-9: best = tot; bc = ('nop', enc)
            dp[k][par] = best; ch[k][par] = bc
    out = []; par = 0; mis = 0; nops = 0
    for k in range(n):
        i = ins[k]; c = ch[k][par]
        if i.kind == 'dir' and i.txt.startswith('.p2align'):
            out.append(i); par = 0; continue
        if i.kind in ('label', 'dir'):
            out.append(i); continue
        if c[0] == 'nop':
            nn = Ins('s_nop 0'); nn.size = 4; out.append(nn); par = 0; nops += 1
        i.enc = c[1]
        sz = (4 if i.enc == '_e32' else 8) if i.flex else i.size
        i.size = sz
        if sz == 8 and par == 1: mis += 1
        par ^= (1 if sz % 8 == 4 else 0)
        out.append(i)
    return out, mis, nops
```

```python
import sys, os, struct
sys.path.insert(0, os.path.dirname(os.path.abspath(__file__)))
from dsl import *

NAME = 'recurrent_scan__sliding_local_dilated__glu_gated_geglu__prompt'

def f2u(x): return struct.unpack('<I', struct.pack('<f', x))[0]

WS_EPOCH = 0
WS_FLAG  = 0x1000
FH1, FH2, FO, FK = WS_FLAG, WS_FLAG + 8192, WS_FLAG + 16384, WS_FLAG + 24576
WS_HALO  = 0x100000
WS_O     = 0x400000
WS_H     = 0x800000
WS_STAMP = 0x1000000
WS_SIZE  = 0x1100000
HPITCH = 112 * 1024

sPX, sPQ, sPO, sPB, sPG, sPU, sPD, sPOUT = 4, 6, 8, 10, 12, 14, 16, 18
sPDBG, sPWS = 20, 22
sX, sW, sQ, sD, sO, sWS, sOUT, sDBG = 24, 28, 32, 36, 40, 44, 48, 52
sWv, sP, sHH, sRB, sJ, sIsA, sT, sRT, sT2, sCN, sKH, sNonce = 56, 57, 58, 59, 60, 61, 62, 63, 64, 65, 66, 67
sT0, sT1, sT2_, sT3 = 68, 69, 70, 71
sXL, sXoff, sW4096, sWbase, sQbase = 72, 73, 74, 75, 76
sHst, sOnes, sLo, sHi = 77, 78, 79, 80
sSo, sSo2 = 81, 82
sB2l, sDbB, sDbA, sObW = 83, 84, 85, 86
sHaB, sHaA, sOa = 87, 88, 89
sFlg, sSpin = 90, 91
sM0, sM1 = 92, 94
sStamp = 96
def S(n, k=1): return 's%d' % n if k == 1 else 's[%d:%d]' % (n, n + k - 1)
def V(n, k=1): return 'v%d' % n if k == 1 else 'v[%d:%d]' % (n, n + k - 1)
def A_(n, k=1): return 'a%d' % n if k == 1 else 'a[%d:%d]' % (n, n + k - 1)

vLane, vL16, vK0, vK1, vIR2, vR = 0, 1, 2, 3, 4, 5
vTRg0, vTRg1, vTRq, vTRc = 6, 7, 8, 9
vOffG, vOffQ = 10, 14
vFlag, vPoll = 18, 19
vT = 20
vAcc = [32, 48]
vXF = 64
vP = 192
aWF = 0
aK, aV, aQ = 16, 32, 48
aAR = 64
aBF = 128
aKP, aVP = 152, 168

OOB = 0x7ffffff0
SLOT = 16384

class Opt:
    stamps = False
    stop_after = None
    PD = 14

def srd(P, dst, ptr, size):
    P.I('s_mov_b32 %s, %s' % (S(dst), S(ptr)))
    P.I('s_and_b32 %s, %s, 0xffff' % (S(dst + 1), S(ptr + 1)))
    P.I('s_mov_b32 %s, 0x%x' % (S(dst + 2), size))
    P.I('s_mov_b32 %s, 0x20000' % S(dst + 3))

class Gen:
    def __init__(self, opt):
        self.o = opt
        self.slow = []
        self.nlab = 0
        self.nstamp = 0

    def lab(self, base):
        self.nlab += 1
        return '%s_%d' % (base, self.nlab)

    def stamp(self, P, idx):
        if not self.o.stamps: return
        P.I('s_memtime s[96:97]')
        P.I('s_waitcnt lgkmcnt(0)')
        P.I('v_mov_b32 %s, s96' % V(vP + 63))
        P.I('s_lshl_b32 s98, s2, 2'); P.I('s_add_u32 s98, s98, %s' % S(sWv)); P.I('s_lshl_b32 s98, s98, 8')
        P.I('s_add_u32 s98, s98, 0x%x' % (WS_STAMP + idx * 4))
        P.I('buffer_store_dword %s, %s, %s, s98 offen' % (V(vP + 63), V(vFlag), S(sWS, 4)))

    def stamp_real(self, P, idx):
        if not self.o.stamps: return
        P.I('s_memrealtime s[96:97]')
        P.I('s_waitcnt lgkmcnt(0)')
        P.I('v_mov_b32 %s, s96' % V(vP + 63))
        P.I('s_lshl_b32 s98, s2, 2'); P.I('s_add_u32 s98, s98, %s' % S(sWv)); P.I('s_lshl_b32 s98, s98, 8')
        P.I('s_add_u32 s98, s98, 0x%x' % (WS_STAMP + idx * 4))
        P.I('buffer_store_dword %s, %s, %s, s98 offen' % (V(vP + 63), V(vFlag), S(sWS, 4)))

    def w_stage_dma(self, sigma, kind, d, q, sec=0):
        slot = sigma % 10
        L = []
        if kind == 'G':
            L.append(mk('s_add_u32 %s, %s, 0x%x' % (S(sSo), S(sWbase), q * 128 * 3584 + 64 * d)))
            srdn, voff = sW, vOffG
        else:
            L.append(mk('s_add_u32 %s, %s, 0x%x' % (S(sSo), S(sQbase), q * 128 * 3072 + sec * 1024)))
            srdn, voff = sQ, vOffQ
        L.insert(0, mk('s_add_u32 m0, %s, 0x%x' % (S(sW4096), slot * SLOT)))
        for n in range(4):
            L.append(mk('buffer_load_dwordx4 %s, %s, %s offen offset:%d lds' % (V(voff + n), S(srdn, 4), S(sSo), n * 1024),
                        tag='W%d' % sigma if n == 3 else None))
        return L

    def steps2(self):
        st = []
        for j in range(4):
            for t in range(6): st.append(('B', 10 * j + t))
        for j in range(4):
            for t in range(4): st.append(('A', 80 + 4 * j + t))
        for j in range(4):
            for t in range(6, 10): st.append(('B', 10 * j + t))
        for h in range(16): st.append(('S', h))
        return st

    def b_stage_dma(self, s2):
        slot = s2 % 10
        st = self.steps2()
        L = []
        for n in range(4):
            kind, ks = st[4 * s2 + n]
            base = {'B': sDbB, 'A': sDbA, 'S': sObW}[kind]
            srdn = sO if kind == 'S' else sD
            L.append(mk('s_add_u32 m0, %s, 0x%x' % (S(sB2l), slot * SLOT + n * 2048)))
            L.append(mk('s_add_u32 %s, %s, 0x%x' % (S(sSo), S(base), ks * 16384)))
            L.append(mk('buffer_load_dwordx4 %s, %s, %s offen lds' % (V(vOffD), S(srdn, 4), S(sSo)),
                        tag='B%d' % s2 if n == 3 else None))
        return L

    def flag_store(self, base_line_sgpr_expr_ins, tagwait):
        L = [mkwaitvm(tagwait)]
        L += base_line_sgpr_expr_ins
        L.append(mk('buffer_store_dword %s, %s, %s, %s offen sc1' % (V(vNonce), V(vFlag), S(sWS, 4), S(sFlg))))
        return L

    def poll_issue(self, off_ins, nlanes_mask, tag):
        L = list(off_ins)
        L.append(mk('v_and_b32 %s, %d, %s' % (V(vPoll), nlanes_mask, V(vLane))))
        L.append(mk('v_lshlrev_b32 %s, 2, %s' % (V(vPoll), V(vPoll))))
        L.append(mk('buffer_load_dword %s, %s, %s, %s offen sc1' % (V(vPoll), V(vPoll), S(sWS, 4), S(sFlg)), tag=tag))
        return L

    def poll_check(self, tag, off_ins, nlanes_mask):
        slow = self.lab('L_slow'); back = self.lab('L_back')
        L = [mkwaitvm(tag)]
        L.append(mk('v_cmp_ne_u32 vcc, %s, %s' % (S(sNonce), V(vPoll))))
        L.append(mk('s_nop 1'))
        L.append(mk('s_cmp_lg_u64 vcc, 0'))
        L.append(mk('s_cbranch_scc1 %s' % slow))
        L.append(Ins(back + ':'))
        Q = []
        Q.append(Ins(slow + ':'))
        Q.append(mk('s_mov_b32 %s, 0' % S(sSpin)))
        loop = self.lab('L_spin')
        Q.append(Ins(loop + ':'))
        Q.append(mk('s_add_u32 %s, %s, 1' % (S(sSpin), S(sSpin))))
        Q.append(mk('s_cmp_gt_u32 %s, 0x8000' % S(sSpin)))
        Q.append(mk('s_cbranch_scc1 %s' % back))
        Q.append(mk('s_sleep 2'))
        Q += [mk(i.txt) for i in off_ins]
        Q.append(mk('v_and_b32 %s, %d, %s' % (V(vPoll), nlanes_mask, V(vLane))))
        Q.append(mk('v_lshlrev_b32 %s, 2, %s' % (V(vPoll), V(vPoll))))
        Q.append(mk('buffer_load_dword %s, %s, %s, %s offen sc1' % (V(vPoll), V(vPoll), S(sWS, 4), S(sFlg))))
        Q.append(mk('s_waitcnt vmcnt(0)'))
        Q.append(mk('v_cmp_ne_u32 vcc, %s, %s' % (S(sNonce), V(vPoll))))
        Q.append(mk('s_nop 1'))
        Q.append(mk('s_cmp_lg_u64 vcc, 0'))
        Q.append(mk('s_cbranch_scc1 %s' % loop))
        Q.append(mk('s_branch %s' % back))
        self.slow += Q
        return L

    def nonce_check(self):
        slow = self.lab('L_nslow'); back = self.lab('L_nback')
        L = [mkwaitvm('NONCE')]
        L.append(mk('v_readfirstlane_b32 %s, %s' % (S(sNonce), V(vNonce))))
        L.append(mk('s_nop 1'))
        L.append(mk('s_cmp_eq_u32 %s, 0' % S(sNonce)))
        L.append(mk('s_cbranch_scc1 %s' % slow))
        L.append(Ins(back + ':'))
        Q = [Ins(slow + ':'), mk('s_mov_b32 %s, 0' % S(sSpin))]
        loop = self.lab('L_nspin')
        Q.append(Ins(loop + ':'))
        Q.append(mk('s_add_u32 %s, %s, 1' % (S(sSpin), S(sSpin))))
        Q.append(mk('s_cmp_gt_u32 %s, 0x8000' % S(sSpin)))
        Q.append(mk('s_cbranch_scc1 %s' % back))
        Q.append(mk('s_sleep 2'))
        Q.append(mk('buffer_load_dword %s, %s, %s, 0 offen sc1' % (V(vNonce), V(vZero), S(sDBG, 4))))
        Q.append(mk('s_waitcnt vmcnt(0)'))
        Q.append(mk('v_readfirstlane_b32 %s, %s' % (S(sNonce), V(vNonce))))
        Q.append(mk('s_nop 1'))
        Q.append(mk('s_cmp_eq_u32 %s, 0' % S(sNonce)))
        Q.append(mk('s_cbranch_scc1 %s' % loop))
        Q.append(mk('s_branch %s' % back))
        self.slow += Q
        return L

    def prologue(self, P):
        I = P.I
        I('s_cmp_ge_u32 s2, 0x100')
        I('s_cbranch_scc1 L_end')
        I('s_load_dwordx16 s[4:19], s[0:1], 0')
        I('s_load_dwordx4 s[20:23], s[0:1], 64')
        I('s_getpc_b64 s[68:69]')
        P.L('L_pc')
        I('v_lshrrev_b32 %s, 6, v0' % V(vT))
        I('v_and_b32 %s, 63, v0' % V(vLane))
        I('v_readfirstlane_b32 %s, %s' % (S(sWv), V(vT)))
        I('s_lshr_b32 %s, s2, 3' % S(sT2_))
        I('s_lshl_b32 %s, %s, 2' % (S(sT2_), S(sT2_)))
        I('s_add_u32 %s, %s, %s' % (S(sT2_), S(sT2_), S(sWv)))
        I('s_lshl_b32 %s, %s, 3' % (S(sT2_), S(sT2_)))
        I('v_add_u32 %s, %s, %s' % (V(vT), S(sT2_), V(vLane)))
        I('v_min_u32 %s, (L_codeend-L_pc)/128, %s' % (V(vT), V(vT)))
        I('v_lshlrev_b32 %s, 7, %s' % (V(vT), V(vT)))
        I('s_mov_b64 exec, 0xff')
        I('global_load_dword %s, %s, s[68:69]' % (V(vT + 1), V(vT)))
        I('s_mov_b64 exec, -1')
        I('s_and_b32 %s, s2, 7' % S(sT0))
        I('s_lshr_b32 %s, s2, 3' % S(sT1))
        I('s_lshr_b32 %s, %s, 2' % (S(sRB), S(sT0))); I('s_lshl_b32 %s, %s, 3' % (S(sRB), S(sRB)))
        I('s_and_b32 %s, %s, 7' % (S(sT2_), S(sT1))); I('s_add_u32 %s, %s, %s' % (S(sRB), S(sRB), S(sT2_)))
        I('s_and_b32 %s, %s, 3' % (S(sJ), S(sT0))); I('s_lshl_b32 %s, %s, 2' % (S(sJ), S(sJ)))
        I('s_lshr_b32 %s, %s, 3' % (S(sT2_), S(sT1))); I('s_add_u32 %s, %s, %s' % (S(sJ), S(sJ), S(sT2_)))
        I('s_and_b32 %s, %s, 1' % (S(sIsA), S(sJ))); I('s_xor_b32 %s, %s, 1' % (S(sIsA), S(sIsA)))
        I('s_lshr_b32 %s, %s, 1' % (S(sJ), S(sJ)))
        I('s_lshl_b32 %s, %s, 2' % (S(sT2), S(sT0))); I('s_and_b32 %s, %s, 3' % (S(sT2_), S(sT1))); I('s_add_u32 %s, %s, %s' % (S(sT2), S(sT2), S(sT2_)))
        I('s_lshr_b32 %s, %s, 2' % (S(sCN), S(sT1)))
        I('s_and_b32 %s, %s, 1' % (S(sP), S(sWv))); I('s_lshr_b32 %s, %s, 1' % (S(sHH), S(sWv)))
        I('s_mov_b32 %s, %s' % (S(sKH), S(sHH)))
        I('s_lshl_b32 %s, %s, 1' % (S(sT), S(sRB))); I('s_add_u32 %s, %s, %s' % (S(sT), S(sT), S(sHH)))
        I('s_lshl_b32 %s, %s, 1' % (S(sRT), S(sT))); I('s_add_u32 %s, %s, %s' % (S(sRT), S(sRT), S(sP)))
        t0, t1, t2 = vP, vP + 1, vP + 2
        vXo = vP + 4
        I('v_lshlrev_b32 %s, 4, %s' % (V(vL16), V(vLane)))
        I('v_lshrrev_b32 %s, 3, %s' % (V(t0), V(vLane)))
        I('v_lshlrev_b32 %s, 11, %s' % (V(t0), V(t0)))
        I('v_and_b32 %s, 7, %s' % (V(t1), V(vLane)))
        I('v_lshrrev_b32 %s, 4, %s' % (V(t2), V(vLane)))
        I('v_xor_b32 %s, %s, %s' % (V(t1), V(t1), V(t2)))
        I('v_lshl_add_u32 %s, %s, 4, %s' % (V(vXo), V(t1), V(t0)))
        I('v_xor_b32 %s, 64, %s' % (V(vXo + 1), V(vXo)))
        I('v_add_u32 %s, 0x%x, %s' % (V(vXo + 2), 30720, V(vXo)))
        I('v_add_u32 %s, 0x%x, %s' % (V(vXo + 3), 46080, V(vXo + 1)))
        I('v_add_u32 %s, 0x%x, %s' % (V(vXo + 1), 15360, V(vXo + 1)))
        I('s_lshl_b32 %s, %s, 6' % (S(sXoff), S(sT))); I('s_add_u32 %s, %s, %s' % (S(sXoff), S(sXoff), S(sP)))
        I('s_lshl_b32 %s, %s, 10' % (S(sXoff), S(sXoff)))
        I('s_lshl_b32 %s, %s, 15' % (S(sXL), S(sWv))); I('s_add_u32 %s, %s, 0x8000' % (S(sXL), S(sXL)))
        I('s_lshl_b32 %s, %s, 12' % (S(sW4096), S(sWv)))
        I('s_waitcnt lgkmcnt(0)')
        srd(P, sX, sPX, 2048 * 512 * 2)
        for c in range(8):
            I('s_add_u32 m0, %s, 0x%x' % (S(sXL), c * 4096))
            I('s_add_u32 %s, %s, %d' % (S(sSo), S(sXoff), c * 128))
            for a in range(4):
                I('buffer_load_dwordx4 %s, %s, %s offen offset:%d lds' % (V(vXo + a), S(sX, 4), S(sSo), a * 1024), tag='X%d' % c if a == 3 else None)
        I('s_cmp_eq_u32 %s, 0' % S(sHH))
        I('s_cselect_b32 %s, %s, %s' % (S(sW), S(sPG), S(sPU)))
        I('s_cselect_b32 %s, %s, %s' % (S(sW + 1), S(sPG + 1), S(sPU + 1)))
        I('s_and_b32 %s, %s, 0xffff' % (S(sW + 1), S(sW + 1)))
        I('s_mov_b32 %s, 0x%x' % (S(sW + 2), 512 * 1792 * 2))
        I('s_mov_b32 %s, 0x20000' % S(sW + 3))
        I('v_lshrrev_b32 %s, 2, %s' % (V(t0), V(vLane)))
        I('v_and_b32 %s, 3, %s' % (V(t1), V(vLane)))
        I('s_lshl_b32 %s, %s, 1' % (S(sT2_), S(sHH)))
        I('v_xor_b32 %s, %s, %s' % (V(t2), S(sT2_), V(t1)))
        I('v_lshlrev_b32 %s, 4, %s' % (V(t2), V(t2)))
        I('v_mul_u32_u24 %s, 0x%x, %s' % (V(vOffG), 3584, V(t0)))
        I('v_add_u32 %s, %s, %s' % (V(vOffG), V(vOffG), V(t2)))
        for n in range(1, 4):
            I('v_add_u32 %s, 0x%x, %s' % (V(vOffG + n), n * (16 * 3584 - 1024), V(vOffG)))
        I('s_mul_i32 %s, %s, %d' % (S(sWbase), S(sP), 64 * 3584))
        I('s_mul_i32 %s, %s, 320' % (S(sT0), S(sJ)))
        I('s_lshl_b32 %s, %s, 7' % (S(sT1), S(sJ))); I('s_add_u32 %s, %s, %d' % (S(sT1), S(sT1), 32 * 80))
        I('s_cmp_eq_u32 %s, 1' % S(sIsA))
        I('s_cselect_b32 %s, %s, %s' % (S(sT0), S(sT1), S(sT0)))
        I('s_add_u32 %s, %s, %s' % (S(sWbase), S(sWbase), S(sT0)))
        P.add(self.w_stage_dma(0, 'G', 0, 0))
        P.add(self.w_stage_dma(1, 'G', 0, 1))
        srd(P, sQ, sPQ, 512 * 1536 * 2)
        srd(P, sD, sPD, 1792 * 512 * 2)
        srd(P, sO, sPO, 512 * 512 * 2)
        srd(P, sWS, sPWS, WS_SIZE)
        srd(P, sOUT, sPOUT, 2048 * 512 * 2)
        srd(P, sDBG, sPDBG, 256)
        I('v_mov_b32 %s, 0' % V(vZero))
        I('v_cmp_eq_u32 vcc, 0, %s' % V(vLane))
        I('v_mov_b32 %s, 0x%x' % (V(vFlag), OOB))
        I('s_mov_b32 %s, 0x3f803f80' % S(sOnes))
        I('v_cndmask_b32 %s, %s, %s, vcc' % (V(vFlag), V(vFlag), V(vZero)))
        I('s_mov_b32 %s, 0x00003f80' % S(sLo))
        I('s_mov_b32 %s, 0x3f800000' % S(sHi))
        I('s_or_b32 %s, s2, %s' % (S(sT0), S(sWv)))
        I('s_cmp_lg_u32 %s, 0' % S(sT0))
        I('s_cbranch_scc1 L_nonce_done')
        opt0 = len(P.ins)
        I('s_load_dword %s, %s, 0' % (S(sT0), S(sPWS, 2)))
        I('s_waitcnt lgkmcnt(0)')
        I('s_mul_i32 %s, %s, 0x9e3779b1' % (S(sT0), S(sT0)))
        I('s_add_u32 %s, %s, 0x85ebca6b' % (S(sT0), S(sT0)))
        I('s_cmp_eq_u32 %s, 0' % S(sT0))
        I('s_cselect_b32 %s, 0x5bd1e995, %s' % (S(sT0), S(sT0)))
        I('v_mov_b32 %s, %s' % (V(vT + 2), S(sT0)))
        I('buffer_store_dword %s, %s, %s, 0 offen sc1' % (V(vT + 2), V(vFlag), S(sDBG, 4)))
        I('buffer_store_dword %s, %s, %s, 0 offen sc1' % (V(vT + 2), V(vFlag), S(sWS, 4)))
        for i_ in P.ins[opt0:]: i_.optional = True
        P.L('L_nonce_done')
        I('v_lshlrev_b32 %s, 4, %s' % (V(t2), V(t1)))
        I('v_mul_u32_u24 %s, 0x%x, %s' % (V(vOffQ), 3072, V(t0)))
        I('v_add_u32 %s, %s, %s' % (V(vOffQ), V(vOffQ), V(t2)))
        for n in range(1, 4):
            I('v_add_u32 %s, 0x%x, %s' % (V(vOffQ + n), n * (16 * 3072 - 1024), V(vOffQ)))
        I('s_mul_i32 %s, %s, %d' % (S(sQbase), S(sP), 64 * 3072))
        I('s_lshl_b32 %s, %s, 7' % (S(sT0), S(sJ))); I('s_lshl_b32 %s, %s, 6' % (S(sT1), S(sHH)))
        I('s_add_u32 %s, %s, %s' % (S(sQbase), S(sQbase), S(sT0))); I('s_add_u32 %s, %s, %s' % (S(sQbase), S(sQbase), S(sT1)))
        nb, hi, r, c = vP + 8, vP + 9, vP + 10, vP + 11
        I('v_bfe_u32 %s, %s, 4, 1' % (V(nb), V(vLane)))
        I('v_lshrrev_b32 %s, 5, %s' % (V(hi), V(vLane)))
        I('v_bfe_u32 %s, %s, 2, 2' % (V(r), V(vLane)))
        I('v_and_b32 %s, 3, %s' % (V(c), V(vLane)))
        cm = vP + 12
        I('v_lshl_add_u32 %s, %s, 3, %s' % (V(cm), V(hi), V(r)))
        I('v_lshlrev_b32 %s, 6, %s' % (V(cm), V(cm)))
        I('v_lshl_add_u32 %s, %s, 3, %s' % (V(cm), V(c), V(cm)))
        I('v_lshl_add_u32 %s, %s, 5, %s' % (V(vTRq), V(nb), V(cm)))
        I('v_lshl_add_u32 %s, %s, 13, %s' % (V(vTRg0), V(nb), V(vTRq)))
        I('v_xor_b32 %s, 32, %s' % (V(vTRg1), V(vTRg0)))
        I('s_mul_i32 %s, %s, 0x%x' % (S(sHst), S(sRT), HPITCH))
        I('s_mul_i32 %s, %s, 10240' % (S(sT0), S(sJ)))
        I('s_lshl_b32 %s, %s, 12' % (S(sT1), S(sJ))); I('s_add_u32 %s, %s, %d' % (S(sT1), S(sT1), 80 * 1024))
        I('s_cmp_eq_u32 %s, 1' % S(sIsA))
        I('s_cselect_b32 %s, %s, %s' % (S(sT0), S(sT1), S(sT0)))
        I('s_add_u32 %s, %s, %s' % (S(sHst), S(sHst), S(sT0)))
        I('s_add_u32 %s, %s, 0x%x' % (S(sHst), S(sHst), WS_H))
        vVa = vP + 16
        i_, g_ = vP + 20, vP + 21
        I('v_and_b32 %s, 31, %s' % (V(i_), V(vLane)))
        I('v_bfe_u32 %s, %s, 1, 3' % (V(g_), V(vLane)))
        I('v_xor_b32 %s, %s, %s' % (V(g_), V(g_), V(hi)))
        I('v_lshlrev_b32 %s, 7, %s' % (V(i_), V(i_)))
        I('v_add_u32 %s, %s, %s' % (V(i_), S(sXL), V(i_)))
        for s4 in range(4):
            I('v_xor_b32 %s, %d, %s' % (V(vVa + s4), 2 * s4, V(g_)))
            I('v_lshl_add_u32 %s, %s, 4, %s' % (V(vVa + s4), V(vVa + s4), V(i_)))
        self.stamp(P, 0)
        sum0, sum1, sq0, sq1 = vP + 24, vP + 25, vP + 26, vP + 27
        for rg in (sum0, sum1, sq0, sq1): I('v_mov_b32 %s, 0' % V(rg))
        def reads(c):
            P.waitvm('X%d' % c)
            for s4 in range(4):
                s = 4 * c + s4
                I('ds_read_b128 %s, %s offset:%d' % (V(vXF + 4 * s, 4), V(vVa + s4), c * 4096), tag='XR%d' % s)
        def dots(c):
            P.waitlg('XR%d' % (4 * c + 3))
            for k in range(16):
                x = vXF + 16 * c + k
                I('v_dot2c_f32_bf16 %s, %s, %s' % (V(sum0 if k % 2 == 0 else sum1), S(sOnes), V(x)))
                I('v_dot2c_f32_bf16 %s, %s, %s' % (V(sq0 if k % 2 == 0 else sq1), V(x), V(x)))
        reads(0)
        for c in range(1, 8):
            reads(c); dots(c - 1)
        dots(7)
        self.stamp(P, 1)
        I('s_barrier', c='x staging consumed by every wave')
        for sg in range(2, 8):
            P.add(self.w_stage_dma(sg, 'G', sg // 4, sg % 4))
        I('buffer_load_dword %s, %s, %s, 0 offen sc1' % (V(vNonce), V(vZero), S(sDBG, 4)), tag='NONCE')
        a_, b_ = vP + 28, vP + 29
        I('v_add_f32 %s, %s, %s' % (V(sum0), V(sum0), V(sum1)))
        I('v_add_f32 %s, %s, %s' % (V(sq0), V(sq0), V(sq1)))
        for rg in (sum0, sq0):
            I('v_mov_b32 %s, %s' % (V(a_), V(rg)))
            I('s_nop 1')
            I('v_permlane32_swap_b32 %s, %s' % (V(a_), V(rg)))
            I('v_add_f32 %s, %s, %s' % (V(rg), V(rg), V(a_)))
        negm = vP + 30
        I('s_mov_b32 %s, 0x%x' % (S(sT0), f2u(1.0 / 512)))
        I('v_mul_f32 %s, %s, %s' % (V(a_), S(sT0), V(sum0)))
        I('v_mul_f32 %s, %s, %s' % (V(b_), S(sT0), V(sq0)))
        I('v_fma_f32 %s, -%s, %s, %s' % (V(b_), V(a_), V(a_), V(b_)))
        I('v_sub_f32 %s, 0, %s' % (V(negm), V(a_)))
        I('v_max_f32 %s, 0, %s' % (V(b_), V(b_)))
        I('v_add_f32 %s, 0x%x, %s' % (V(vIR2), f2u(1e-5), V(b_)))
        I('v_rsq_f32 %s, %s' % (V(vR), V(vIR2)))
        C0 = -2.0 * 1.4426950408889634 * 0.7978845608028654
        C1 = C0 * 0.044715
        I('s_mov_b32 %s, 0x%x' % (S(sT1), f2u(C1)))
        I('v_mul_f32 %s, 0x%x, %s' % (V(vK0), f2u(C0), V(vR)))
        I('v_mul_f32 %s, %s, %s' % (V(a_), V(vR), V(vR)))
        I('v_mul_f32 %s, %s, %s' % (V(a_), V(a_), V(vR)))
        I('v_mul_f32 %s, %s, %s' % (V(vK1), S(sT1), V(a_)))
        tt = [vT, vT + 2, vT + 4, vT + 6]
        N = 128
        for k in range(N + 2):
            if k < N:
                x = vXF + k; t = tt[k % 4]
                I('v_dot2_f32_bf16 %s, %s, %s, %s' % (V(t), V(x), S(sLo), V(negm)))
                I('v_dot2_f32_bf16 %s, %s, %s, %s' % (V(t + 1), V(x), S(sHi), V(negm)))
            if k >= 2:
                x = vXF + k - 2; t = tt[(k - 2) % 4]
                if k >= N: I('s_nop 1')
                I('v_cvt_pk_bf16_f32 %s, %s, %s' % (V(x), V(t), V(t + 1)))
        self.stamp(P, 2)

    def geglu(self, acc, ks_local):
        L = []
        t0, t1, g0, g1 = vT, vT + 1, vT + 2, vT + 3
        hp = vT + 4
        for e in range(0, 8, 2):
            a0, a1, u0, u1 = acc + e, acc + e + 1, acc + 8 + e, acc + 9 + e
            L += [mk('v_mul_f32 %s, %s, %s' % (V(t0), V(a0), V(a0))), mk('v_mul_f32 %s, %s, %s' % (V(t1), V(a1), V(a1)))]
            L += [mk('v_fma_f32 %s, %s, %s, %s' % (V(t0), V(t0), V(vK1), V(vK0))), mk('v_fma_f32 %s, %s, %s, %s' % (V(t1), V(t1), V(vK1), V(vK0)))]
            L += [mk('v_mul_f32 %s, %s, %s' % (V(t0), V(a0), V(t0))), mk('v_mul_f32 %s, %s, %s' % (V(t1), V(a1), V(t1)))]
            L += [mk('v_exp_f32 %s, %s' % (V(t0), V(t0))), mk('v_exp_f32 %s, %s' % (V(t1), V(t1)))]
            L += [mk('v_mul_f32 %s, %s, %s' % (V(g0), V(a0), V(u0))), mk('v_mul_f32 %s, %s, %s' % (V(g1), V(a1), V(u1)))]
            L += [mk('v_fma_f32 %s, %s, %s, %s' % (V(t0), V(t0), V(vIR2), V(vIR2))), mk('v_fma_f32 %s, %s, %s, %s' % (V(t1), V(t1), V(vIR2), V(vIR2)))]
            L += [mk('v_rcp_f32 %s, %s' % (V(t0), V(t0))), mk('v_rcp_f32 %s, %s' % (V(t1), V(t1)))]
            L += [mk('v_mul_f32 %s, %s, %s' % (V(g0), V(g0), V(t0))), mk('v_mul_f32 %s, %s, %s' % (V(g1), V(g1), V(t1)))]
            L += [mk('v_cvt_pk_bf16_f32 %s, %s, %s' % (V(hp + e // 2), V(g0), V(g1)))]
        L.append(mk('s_add_u32 %s, %s, 0x%x' % (S(sSo2), S(sHst), ks_local * 1024)))
        L.append(mk('buffer_store_dwordx4 %s, %s, %s, %s offen sc1' % (V(hp, 4), V(vL16), S(sWS, 4), S(sSo2)), tag='HS%d' % ks_local))
        return L

    def qk_epi(self, acc, adst):
        L = []
        t = [vT, vT + 1, vT + 2, vT + 3]
        for n in range(8):
            ta, tb = t[2 * (n % 2)], t[2 * (n % 2) + 1]
            L += [mk('v_mul_f32 %s, %s, %s' % (V(ta), V(vR), V(acc + 2 * n))), mk('v_mul_f32 %s, %s, %s' % (V(tb), V(vR), V(acc + 2 * n + 1)))]
            L += [mk('v_cvt_pk_bf16_f32 %s, %s, %s' % (V(ta), V(ta), V(tb)))]
            L += [mk('v_accvgpr_write_b32 %s, %s' % (A_(adst + n), V(ta)))]
        return L

    def v_epi(self, acc, adst):
        L = []
        t = [vT, vT + 1, vT + 2, vT + 3]
        for n in range(8):
            ta, tb = t[2 * (n % 2)], t[2 * (n % 2) + 1]
            L += [mk('v_mul_f32 %s, %s, %s' % (V(ta), V(vRV + 2 * n), V(acc + 2 * n))), mk('v_mul_f32 %s, %s, %s' % (V(tb), V(vRV + 2 * n + 1), V(acc + 2 * n + 1)))]
            L += [mk('v_cvt_pk_bf16_f32 %s, %s, %s' % (V(ta), V(ta), V(tb)))]
            L += [mk('v_accvgpr_write_b32 %s, %s' % (A_(adst + n), V(ta)))]
        return L

    def rv_gather(self):
        L = [mk('v_lshrrev_b32 %s, 5, %s' % (V(vHi16), V(vLane))), mk('v_lshlrev_b32 %s, 4, %s' % (V(vHi16), V(vHi16)))]
        for g in range(4):
            for r in range(4):
                L.append(mk('ds_bpermute_b32 %s, %s, %s offset:%d' % (V(vRV + 4 * g + r), V(vHi16), V(vR), (8 * g + r) * 4), tag='RV' if (g, r) == (3, 3) else None))
        return L

    def halo_export(self):
        L = []
        L += [mk('s_lshl_b32 %s, %s, 3' % (S(sT0), S(sT))), mk('s_add_u32 %s, %s, %s' % (S(sT0), S(sT0), S(sJ))),
              mk('s_lshl_b32 %s, %s, 1' % (S(sT0), S(sT0))), mk('s_add_u32 %s, %s, %s' % (S(sT0), S(sT0), S(sP))),
              mk('s_mul_i32 %s, %s, 6144' % (S(sT0), S(sT0))), mk('s_add_u32 %s, %s, 0x%x' % (S(sT0), S(sT0), WS_HALO))]
        srcs = [aK, aK + 4, aK + 8, aK + 12, aV + 4, aV + 12]
        for n, a in enumerate(srcs):
            if n == 4: L.append(mk('s_add_u32 %s, %s, 4096' % (S(sT0), S(sT0))))
            L.append(mk('buffer_store_dwordx4 %s, %s, %s, %s offen offset:%d sc1' % (A_(a, 4), V(vL16), S(sWS, 4), S(sT0), (n % 4) * 1024), tag='KX' if n == 5 else None))
        return L

    def flag_off(self, base, Tsrc, idx_ins):
        L = list(idx_ins)
        L += [mk('s_lshl_b32 %s, %s, 8' % (S(sFlg), S(Tsrc))), mk('s_lshl_b32 %s, %s, 2' % (S(sT1), S(sT1))),
              mk('s_add_u32 %s, %s, %s' % (S(sFlg), S(sFlg), S(sT1))), mk('s_add_u32 %s, %s, 0x%x' % (S(sFlg), S(sFlg), base))]
        return L
    def idx_j2p(self):
        return [mk('s_lshl_b32 %s, %s, 1' % (S(sT1), S(sJ))), mk('s_add_u32 %s, %s, %s' % (S(sT1), S(sT1), S(sP)))]
    def idx_cbq2p(self):
        return [mk('s_lshl_b32 %s, %s, 1' % (S(sT1), S(sJ))), mk('s_add_u32 %s, %s, 1' % (S(sT1), S(sT1))), mk('s_sub_u32 %s, %s, %s' % (S(sT1), S(sT1), S(sIsA))),
                mk('s_lshl_b32 %s, %s, 1' % (S(sT1), S(sT1))), mk('s_add_u32 %s, %s, %s' % (S(sT1), S(sT1), S(sP)))]
    def line_off(self, base, Tsrc):
        return [mk('s_lshl_b32 %s, %s, 8' % (S(sFlg), S(Tsrc))), mk('s_add_u32 %s, %s, 0x%x' % (S(sFlg), S(sFlg), base))]

    def phase1(self, P, isA):
        if isA: dts = [('G', 0, 0), ('G', 1, 0), ('K', 2, 1), ('V', 3, 2), ('Q', 4, 0)]
        else:   dts = [('G', d, 0) for d in range(5)]
        tiles = []
        for (kind, d, sec) in dts:
            for t in range(2): tiles.append((kind, d, t, sec))
        def stage_dma(sigma):
            if sigma < 20:
                kind, d, sec = dts[sigma // 4]
                return self.w_stage_dma(sigma, 'G' if kind == 'G' else 'Q', d, sigma % 4, sec)
            return self.b_stage_dma(sigma - 20)
        P.add(stage_dma(8)); P.add(stage_dma(9))
        P.add(self.phase2_setup())
        cur = {'pat': None}
        def reads(n):
            tau, s = n >> 5, n & 31
            kind, d, t, sec = tiles[tau]
            sigma = 4 * d + (s >> 3); slot = sigma % 10
            addr = slot * SLOT + (s & 7) * 1024
            if kind == 'G': pat = vTRg0 if t == 0 else vTRg1
            else: pat = vTRq; addr += t * 8192
            win, off = addr >> 16, addr & 0xffff
            L = []
            if win == 0: reg = pat
            else:
                if cur['pat'] != (pat, win):
                    L.append(mk('v_add_u32 %s, 0x%x, %s' % (V(vTRc), win << 16, V(pat)))); cur['pat'] = (pat, win)
                reg = vTRc
            fr = aWF + 4 * (n % 4)
            L.append(mk('ds_read_b64_tr_b16 %s, %s offset:%d' % (A_(fr, 2), V(reg), off)))
            L.append(mk('ds_read_b64_tr_b16 %s, %s offset:%d' % (A_(fr + 2, 2), V(reg), off + 256), tag='F%d' % n))
            return L
        def mfma(n):
            tau, s = n >> 5, n & 31
            kind = tiles[tau][0]
            acc = vAcc[tau & 1]; fr = aWF + 4 * (n % 4); x = vXF + 4 * s
            c = '0' if s == 0 else V(acc, 16)
            if kind == 'V': return mk('v_mfma_f32_32x32x16_bf16 %s, %s, %s, %s' % (V(acc, 16), V(x, 4), A_(fr, 4), c))
            return mk('v_mfma_f32_32x32x16_bf16 %s, %s, %s, %s' % (V(acc, 16), A_(fr, 4), V(x, 4), c))
        def epilogue(tau):
            kind, d, t, sec = tiles[tau]; acc = vAcc[tau & 1]
            if kind == 'G': return self.geglu(acc, 2 * d + t)
            if kind == 'K': return self.qk_epi(acc, aK + 8 * t)
            if kind == 'Q': return self.qk_epi(acc, aQ + 8 * t)
            if kind == 'V': return [mkwaitlg('RV')] + self.v_epi(acc, aV + 8 * t)
        extra = {tau: [] for tau in range(11)}
        for d in range(1, 5):
            sg = [4 * d + 6 + k for k in range(4)]
            extra[2 * d] += stage_dma(sg[0]) + stage_dma(sg[1])
            extra[2 * d + 1] += stage_dma(sg[2]) + stage_dma(sg[3])
        if isA:
            extra[5] += self.rv_gather()
            extra[5] += self.nonce_check() + self.flag_store(self.flag_off(FH1, sT, self.idx_cbq2p()), 'HS3')
            late9 = self.halo_export()
        else:
            extra[7] += self.nonce_check() + self.flag_store(self.flag_off(FH1, sT, self.idx_cbq2p()), 'HS5')
            late9 = []
        P.waitvm('W3'); P.I('s_barrier')
        for n in range(3): P.add(reads(n))
        P.waitlg('F0')
        for tau in range(10):
            epi = epilogue(tau - 1) if tau > 0 else []
            ex = extra[tau]
            if tau == 9: epi = epi + late9
            cost_e = sum(i.cost() for i in epi); cost_x = sum(i.cost() for i in ex)
            per = max(16.0, (cost_e + cost_x) / 28.0)
            qe, qx = list(epi), list(ex)
            for s in range(32):
                n = tau * 32 + s
                P.add(mfma(n))
                last_dt_step = (tiles[tau][2] == 1 and tau < 9)
                if n + 1 < 320: P.waitlg('F%d' % (n + 1))
                if last_dt_step and s == 30:
                    dn = tiles[tau + 1][1]
                    P.waitvm('W%d' % (4 * dn + 3)); P.I('s_barrier')
                    P.add(reads(n + 2)); P.add(reads(n + 3))
                elif last_dt_step and s == 29:
                    pass
                elif n + 3 < 320:
                    P.add(reads(n + 3))
                budget = per
                while budget > 0 and (qx or (qe and s >= 3)):
                    use_e = qe and s >= 3 and (not qx or (len(qe) * 1.0 / max(1, len(epi)) >= len(qx) * 1.0 / max(1, len(ex))))
                    q = qe if use_e else qx
                    i = q.pop(0); P.add(i); budget -= i.cost()
                if s == 31:
                    P.add(qx); P.add(qe); qx = []; qe = []
            self.stamp(P, 3 + tau)
        return tiles

    def phase2_setup(self):
        L = []
        L += [mk('s_lshl_b32 %s, %s, 7' % (S(sT0), S(sCN))), mk('s_lshl_b32 %s, %s, 6' % (S(sT1), S(sP))), mk('s_add_u32 %s, %s, %s' % (S(sT0), S(sT0), S(sT1)))]
        L += [mk('s_mul_i32 %s, %s, 0x%x' % (S(sDbB), S(sKH), 40 * 16384)), mk('s_add_u32 %s, %s, %s' % (S(sDbB), S(sDbB), S(sT0)))]
        L += [mk('s_mul_i32 %s, %s, 0x%x' % (S(sDbA), S(sKH), 16 * 16384)), mk('s_add_u32 %s, %s, %s' % (S(sDbA), S(sDbA), S(sT0)))]
        L += [mk('s_mov_b32 %s, %s' % (S(sObW), S(sDbA)))]
        L += [mk('s_lshl_b32 %s, %s, 13' % (S(sB2l), S(sKH))), mk('s_lshl_b32 %s, %s, 10' % (S(sT1), S(sP))), mk('s_add_u32 %s, %s, %s' % (S(sB2l), S(sB2l), S(sT1)))]
        L += [mk('s_lshl_b32 %s, %s, 1' % (S(sT0), S(sT2))), mk('s_add_u32 %s, %s, %s' % (S(sT0), S(sT0), S(sP)))]
        L += [mk('s_mul_i32 %s, %s, 0x%x' % (S(sT1), S(sT0), HPITCH)), mk('s_add_u32 %s, %s, 0x%x' % (S(sT1), S(sT1), WS_H))]
        L += [mk('s_mul_i32 %s, %s, 0x%x' % (S(sHaB), S(sKH), 40 * 1024)), mk('s_add_u32 %s, %s, %s' % (S(sHaB), S(sHaB), S(sT1)))]
        L += [mk('s_mul_i32 %s, %s, 0x%x' % (S(sHaA), S(sKH), 16 * 1024)), mk('s_add_u32 %s, %s, %s' % (S(sHaA), S(sHaA), S(sT1)))]
        L += [mk('s_lshl_b32 %s, %s, 15' % (S(sOa), S(sT0))), mk('s_mul_i32 %s, %s, 0x%x' % (S(sT1), S(sKH), 16 * 1024)),
              mk('s_add_u32 %s, %s, %s' % (S(sOa), S(sOa), S(sT1))), mk('s_add_u32 %s, %s, 0x%x' % (S(sOa), S(sOa), WS_O))]
        L += [mk('v_lshrrev_b32 %s, 2, %s' % (V(vOffD), V(vLane))), mk('v_lshlrev_b32 %s, 10, %s' % (V(vOffD), V(vOffD))),
              mk('v_and_b32 %s, 3, %s' % (V(vT), V(vLane))), mk('v_lshl_add_u32 %s, %s, 4, %s' % (V(vOffD), V(vT), V(vOffD)))]
        L += [mk('v_lshrrev_b32 %s, 5, %s' % (V(vT), V(vLane))), mk('v_bfe_u32 %s, %s, 2, 2' % (V(vT + 1), V(vLane))),
              mk('v_lshl_add_u32 %s, %s, 2, %s' % (V(vT), V(vT), V(vT + 1))), mk('v_lshlrev_b32 %s, 6, %s' % (V(vT), V(vT))),
              mk('v_bfe_u32 %s, %s, 4, 1' % (V(vT + 1), V(vLane))), mk('v_lshl_add_u32 %s, %s, 5, %s' % (V(vT), V(vT + 1), V(vT))),
              mk('v_and_b32 %s, 3, %s' % (V(vT + 1), V(vLane))), mk('v_lshl_add_u32 %s, %s, 3, %s' % (V(vT), V(vT + 1), V(vT)))]
        L += [mk('s_lshl_b32 %s, %s, 13' % (S(sT0), S(sKH))), mk('s_lshl_b32 %s, %s, 10' % (S(sT1), S(sKH))), mk('s_add_u32 %s, %s, %s' % (S(sT1), S(sT1), S(sT0)))]
        L += [mk('v_add_u32 %s, %s, %s' % (V(vTRk), S(sT1), V(vT)))]
        L += [mk('v_xor_b32 %s, 0x400, %s' % (V(vTRs), V(vTRk)))]
        return L

    def attention(self):
        L = []
        BIG = f2u(-1e30)
        u = vAT
        L += [mk('v_lshrrev_b32 %s, 5, %s' % (V(u + 1), V(vLane))), mk('v_and_b32 %s, 31, %s' % (V(u), V(vLane))),
              mk('v_lshlrev_b32 %s, 2, %s' % (V(u + 1), V(u + 1))), mk('v_sub_u32 %s, %s, %s' % (V(u), V(u), V(u + 1)))]
        L += [mk('v_mov_b32 %s, 0x%x' % (V(u + 2), BIG)), mk('v_mov_b32 %s, 0xffff' % V(u + 3)), mk('v_mov_b32 %s, 0xffff0000' % V(u + 4))]
        L += [mk('s_cmp_eq_u32 %s, 0' % S(sT)), mk('s_cselect_b32 %s, 0, 8' % S(sT0))]
        ent = [(g, r, -(8 * g + r), 4 * g + r) for g in range(4) for r in range(4)] + [(4, r, 8 - r, 16 + r) for r in range(4)]
        for k in range(0, 20, 2):
            (g0, r0, d0, i0), (g1, r1, d1, i1) = ent[k], ent[k + 1]
            lim = '8' if g0 < 4 else S(sT0)
            for (d, tr_, sm) in ((d0, u + 5, sM0), (d1, u + 6, sM1)):
                if d >= 0: L.append(mk('v_add_u32 %s, %d, %s' % (V(tr_), d, V(u))))
                else: L.append(mk('v_subrev_u32 %s, %d, %s' % (V(tr_), -d, V(u))))
            L.append(mk('v_cmp_gt_u32 %s, %s, %s' % (S(sM0, 2), lim, V(u + 5))))
            L.append(mk('v_cmp_gt_u32 %s, %s, %s' % (S(sM1, 2), lim, V(u + 6))))
            L.append(mk('s_nop 0'))
            L.append(mk('v_cndmask_b32 %s, %s, %s, %s' % (V(vCM + i0), V(u + 2), V(vZero), S(sM0, 2))))
            L.append(mk('v_cndmask_b32 %s, %s, %s, %s' % (V(vCM + i1), V(u + 2), V(vZero), S(sM1, 2))))
            L.append(mk('v_cndmask_b32 %s, %s, %s, %s' % (V(u + 5), V(vZero), V(u + 3), S(sM0, 2))))
            L.append(mk('v_cndmask_b32 %s, %s, %s, %s' % (V(u + 6), V(vZero), V(u + 4), S(sM1, 2))))
            L.append(mk('v_or_b32 %s, %s, %s' % (V(vMM + k // 2), V(u + 5), V(u + 6))))
        L += [mk('v_mov_b32 %s, 0' % V(vBP)), mk('v_mov_b32 %s, 0' % V(vBP + 1))]
        CS = 0.25 * 1.4426950408889634
        L.append(mk('s_mov_b32 %s, 0x%x' % (S(sCS), f2u(CS))))
        self.att_split = len(L)
        for hd in range(4):
            hp, h = hd >> 1, hd & 1
            Kop, Qop, Kp = aK + 8 * hp + 4 * h, aQ + 8 * hp + 4 * h, aKP + 8 * hp + 4 * h
            Vop, Vp = aV + 8 * hp, aVP + 4 * hp
            c = [vAT + r for r in range(4)]; m = vAT + 4; m2 = vAT + 5; l = vAT + 6; l2 = vAT + 7
            L.append(mk('v_mfma_f32_32x32x16_bf16 %s, %s, %s, %s' % (V(vSO, 16), A_(Kop, 4), A_(Qop, 4), V(vCM, 16))))
            L.append(mk('v_mfma_f32_32x32x16_bf16 %s, %s, %s, %s' % (V(vSP, 16), A_(Kp, 4), A_(Qop, 4), V(vCM + 4, 16))))
            L.append(mk('s_nop 7')); L.append(mk('s_nop 3'))
            for r in range(4):
                L.append(mk('v_max3_f32 %s, %s, %s, %s' % (V(c[r]), V(vSO + r), V(vSO + 4 + r), V(vSO + 8 + r))))
            for r in range(4):
                L.append(mk('v_max3_f32 %s, %s, %s, %s' % (V(c[r]), V(c[r]), V(vSO + 12 + r), V(vSP + 12 + r))))
            L.append(mk('v_max3_f32 %s, %s, %s, %s' % (V(m), V(c[0]), V(c[1]), V(c[2]))))
            L.append(mk('v_max_f32 %s, %s, %s' % (V(m), V(m), V(c[3]))))
            L.append(mk('v_mov_b32 %s, %s' % (V(m2), V(m))))
            L.append(mk('s_nop 1'))
            L.append(mk('v_permlane32_swap_b32 %s, %s' % (V(m2), V(m))))
            L.append(mk('v_max_f32 %s, %s, %s' % (V(m), V(m), V(m2))))
            L.append(mk('v_mul_f32 %s, %s, %s' % (V(m), S(sCS), V(m))))
            for r in range(4):
                L.append(mk('v_fma_f32 %s, %s, %s, -%s' % (V(c[r]), V(c[r]), S(sCS), V(m))))
            for r in range(4):
                L.append(mk('v_exp_f32 %s, %s' % (V(c[r]), V(c[r]))))
            L.append(mk('s_nop 0'))
            L.append(mk('v_add_f32 %s, %s, %s' % (V(l), V(c[0]), V(c[1]))))
            L.append(mk('v_add_f32 %s, %s, %s' % (V(l2), V(c[2]), V(c[3]))))
            L.append(mk('v_add_f32 %s, %s, %s' % (V(l), V(l), V(l2))))
            L.append(mk('v_mov_b32 %s, %s' % (V(l2), V(l))))
            L.append(mk('s_nop 1'))
            L.append(mk('v_permlane32_swap_b32 %s, %s' % (V(l2), V(l))))
            L.append(mk('v_add_f32 %s, %s, %s' % (V(l), V(l), V(l2))))
            L.append(mk('v_rcp_f32 %s, %s' % (V(l), V(l))))
            L.append(mk('s_nop 0'))
            for r in range(4):
                L.append(mk('v_mul_f32 %s, %s, %s' % (V(c[r]), V(c[r]), V(l))))
            L.append(mk('v_cvt_pk_bf16_f32 %s, %s, %s' % (V(c[0]), V(c[0]), V(c[1]))))
            L.append(mk('v_cvt_pk_bf16_f32 %s, %s, %s' % (V(c[2]), V(c[2]), V(c[3]))))
            for g in range(4):
                L.append(mk('v_and_b32 %s, %s, %s' % (V(vBO + 2 * g), V(c[0]), V(vMM + 2 * g))))
                L.append(mk('v_and_b32 %s, %s, %s' % (V(vBO + 2 * g + 1), V(c[2]), V(vMM + 2 * g + 1))))
            L.append(mk('v_and_b32 %s, %s, %s' % (V(vBP + 2), V(c[0]), V(vMM + 8))))
            L.append(mk('v_and_b32 %s, %s, %s' % (V(vBP + 3), V(c[2]), V(vMM + 9))))
            L.append(mk('s_nop 1'))
            L.append(mk('v_mfma_f32_32x32x16_bf16 %s, %s, %s, 0' % (V(vOA, 16), A_(Vop, 4), V(vBO, 4))))
            L.append(mk('v_mfma_f32_32x32x16_bf16 %s, %s, %s, %s' % (V(vOA, 16), A_(Vop + 4, 4), V(vBO + 4, 4), V(vOA, 16))))
            L.append(mk('v_mfma_f32_32x32x16_bf16 %s, %s, %s, %s' % (V(vOA, 16), A_(Vp, 4), V(vBP, 4), V(vOA, 16))))
            L.append(mk('s_nop 7')); L.append(mk('s_nop 3'))
            o = vOA + 8 * h
            for n in range(4):
                L.append(mk('v_cvt_pk_bf16_f32 %s, %s, %s' % (V(vOP + n), V(o + 2 * n), V(o + 2 * n + 1))))
            L.append(mk('s_add_u32 %s, %s, %d' % (S(sSo2), S(sOst), hd * 1024)))
            L.append(mk('buffer_store_dwordx4 %s, %s, %s, %s offen sc1' % (V(vOP, 4), V(vL16), S(sWS, 4), S(sSo2)), tag='OS%d' % hd))
        return L

    def halo_import(self):
        L = [mk('s_cmp_eq_u32 %s, 0' % S(sT)), mk('s_cselect_b32 %s, 0, 1' % S(sT1)), mk('s_sub_u32 %s, %s, %s' % (S(sTp), S(sT), S(sT1)))]
        return L
    def halo_loads(self):
        L = [mk('s_lshl_b32 %s, %s, 3' % (S(sT0), S(sTp))), mk('s_add_u32 %s, %s, %s' % (S(sT0), S(sT0), S(sJ))),
             mk('s_lshl_b32 %s, %s, 1' % (S(sT0), S(sT0))), mk('s_add_u32 %s, %s, %s' % (S(sT0), S(sT0), S(sP))),
             mk('s_mul_i32 %s, %s, 6144' % (S(sT0), S(sT0))), mk('s_add_u32 %s, %s, 0x%x' % (S(sT0), S(sT0), WS_HALO))]
        dsts = [aKP, aKP + 4, aKP + 8, aKP + 12, aVP, aVP + 4]
        for n, a in enumerate(dsts):
            if n == 4: L.append(mk('s_add_u32 %s, %s, 4096' % (S(sT0), S(sT0))))
            L.append(mk('buffer_load_dwordx4 %s, %s, %s, %s offen offset:%d sc1' % (A_(a, 4), V(vL16), S(sWS, 4), S(sT0), (n % 4) * 1024), tag='KI' if n == 5 else None))
        return L

    def phase2(self, P, isA):
        I = P.I
        PD = self.o.PD
        st = self.steps2()
        NS = len(st)
        accDk, accDs, accSk, accSs = vAcc[0], vAcc[1], vXF, vXF + 16
        off1 = self.line_off(FH1, sT2)
        P.add(self.poll_issue(off1, 31, 'PH1'))
        if isA:
            P.add([mk('s_nop 7')])
            P.add(self.qk_epi(vAcc[1], aQ + 8))
            P.add(self.flag_store(self.flag_off(FK, sT, self.idx_j2p()), 'KX'))
        else:
            P.add([mk('s_nop 7')])
            P.add(self.geglu(vAcc[1], 9))
        I('s_barrier', c='phase-1 LDS reads finished everywhere; B0..B5 landed is checked below')
        for s2 in range(6, 10): P.add(self.b_stage_dma(s2))
        self.stamp(P, 13)
        if self.o.stop_after == 'p1':
            if not isA: P.add(self.flag_store(self.flag_off(FH2, sT, self.idx_j2p()), 'HS9'))
            I('s_waitcnt vmcnt(0)'); I('s_endpgm'); return
        P.add(self.poll_check('PH1', off1, 31))
        self.stamp(P, 14)
        soff_state = {}
        def aload(s):
            kind, ks = st[s]
            base = {'B': sHaB, 'A': sHaA, 'S': sOa}[kind]
            L = []
            k0 = soff_state.get('k')
            if k0 is not None and k0[0] == kind and 0 <= ks - k0[1] <= 3: off = (ks - k0[1]) * 1024
            else:
                L.append(mk('s_add_u32 %s, %s, 0x%x' % (S(sSoA), S(base), ks * 1024))); soff_state['k'] = (kind, ks); off = 0
            r = aAR + 4 * (s % 16)
            L.append(mk('buffer_load_dwordx4 %s, %s, %s, %s offen offset:%d sc1' % (A_(r, 4), V(vL16), S(sWS, 4), S(sSoA), off), tag='A%d' % s))
            return L
        for s in range(PD): P.add(aload(s))
        I('v_lshrrev_b32 %s, 3, %s' % (V(vXo2), V(vLane))); I('v_lshlrev_b32 %s, 10, %s' % (V(vXo2), V(vXo2)))
        I('v_and_b32 %s, 7, %s' % (V(vT), V(vLane))); I('v_lshl_add_u32 %s, %s, 4, %s' % (V(vXo2), V(vT), V(vXo2)))
        I('s_lshl_b32 %s, %s, 6' % (S(sT0), S(sT2))); I('s_lshl_b32 %s, %s, 4' % (S(sT1), S(sWv))); I('s_add_u32 %s, %s, %s' % (S(sT0), S(sT0), S(sT1)))
        I('s_lshl_b32 %s, %s, 10' % (S(sT0), S(sT0))); I('s_lshl_b32 %s, %s, 7' % (S(sT1), S(sCN))); I('s_add_u32 %s, %s, %s' % (S(sXres), S(sT0), S(sT1)))
        I('s_add_u32 %s, %s, 8192' % (S(sXres2), S(sXres)))
        I('buffer_load_dwordx4 %s, %s, %s, %s offen' % (V(vXR, 4), V(vXo2), S(sX, 4), S(sXres)))
        I('buffer_load_dwordx4 %s, %s, %s, %s offen' % (V(vXR + 4, 4), V(vXo2), S(sX, 4), S(sXres2)), tag='XR')
        cur = {}
        def breads(s):
            slot = (s // 4) % 10
            addr = slot * SLOT + (s % 4) * 2048
            win, off = addr >> 16, addr & 0xffff
            L = []
            regs = []
            for (pat, tmp, key) in ((vTRk, vTRkc, 'k'), (vTRs, vTRsc, 's')):
                if win == 0: regs.append(pat)
                else:
                    if cur.get(key) != win:
                        L.append(mk('v_add_u32 %s, 0x%x, %s' % (V(tmp), win << 16, V(pat)))); cur[key] = win
                    regs.append(tmp)
            fr = aBF + 8 * (s % 3)
            L.append(mk('ds_read_b64_tr_b16 %s, %s offset:%d' % (A_(fr, 2), V(regs[0]), off)))
            L.append(mk('ds_read_b64_tr_b16 %s, %s offset:%d' % (A_(fr + 2, 2), V(regs[0]), off + 512), tag='BK%d' % s))
            L.append(mk('ds_read_b64_tr_b16 %s, %s offset:%d' % (A_(fr + 4, 2), V(regs[1]), off)))
            L.append(mk('ds_read_b64_tr_b16 %s, %s offset:%d' % (A_(fr + 6, 2), V(regs[1]), off + 512), tag='BS%d' % s))
            return L
        fill = {s: [] for s in range(NS + 1)}
        offH2 = self.line_off(FH2, sT2); offO = self.line_off(FO, sT2)
        g2_first = 40; s_first = 56
        fill[g2_first - PD - 6] += self.poll_issue(offH2, 15, 'PH2')
        pre = {s: [] for s in range(NS + 1)}
        pre[g2_first - PD] += self.poll_check('PH2', offH2, 15)
        fill[s_first - PD - 6] += self.poll_issue(offO, 15, 'PO')
        pre[s_first - PD] += self.poll_check('PO', offO, 15)
        if not isA:
            fill[3] += self.flag_store(self.flag_off(FH2, sT, self.idx_j2p()), 'HS9')
        if isA:
            offK = self.flag_off(FK, sTp, self.idx_j2p())
            att = self.attention()
            setup, heads = att[:self.att_split], att[self.att_split:]
            ostb = [mk('s_lshl_b32 %s, %s, 15' % (S(sOst), S(sRT))), mk('s_lshl_b32 %s, %s, 12' % (S(sT1), S(sJ))),
                    mk('s_add_u32 %s, %s, %s' % (S(sOst), S(sOst), S(sT1))), mk('s_add_u32 %s, %s, 0x%x' % (S(sOst), S(sOst), WS_O))]
            fill[0] += self.halo_import() + ostb + self.poll_issue(offK, 0, 'PK')
            stream_setup = setup
            fill[0] += setup[:len(setup) // 3]; fill[1] += setup[len(setup) // 3:2 * len(setup) // 3]; fill[2] += setup[2 * len(setup) // 3:]
            fill[4] += self.poll_check('PK', offK, 0) + self.halo_loads()
            per = (len(heads) + 15) // 16
            hl = [mkwaitvm('KI')] + heads
            for k in range(16):
                fill[8 + k] += hl[k * per:(k + 1) * per] if k < 15 else hl[15 * per:]
            fill[28] += self.flag_store(self.flag_off(FO, sRTT, self.idx_j2p()), 'OS3')
        XD, XS, YT = 8 * SLOT, 9 * SLOT, 0
        dfin_w = [mk('s_nop 7'), mk('v_add_u32 %s, %s, %s' % (V(vXW), S(sW4096), V(vL16))), mk('v_add_u32 %s, 0x%x, %s' % (V(vXW), XD, V(vXW)))]
        for n in range(4):
            dfin_w.append(mk('ds_write_b128 %s, %s offset:%d' % (V(vXW), V(accDs + 4 * n, 4), n * 1024), tag='DW' if n == 3 else None))
        dfin_w.append(mk('s_xor_b32 %s, %s, 0x2000' % (S(sT0), S(sW4096))))
        dfin_w.append(mk('v_add_u32 %s, %s, %s' % (V(vXRd), S(sT0), V(vL16))))
        dfin_w.append(mk('v_add_u32 %s, 0x%x, %s' % (V(vXRd), XD, V(vXRd))))
        fill[57] += dfin_w
        dfin_r = []
        for n in range(4):
            dfin_r.append(mk('ds_read_b128 %s, %s offset:%d' % (V(vDP + 4 * n, 4), V(vXRd), n * 1024), tag='DR' if n == 3 else None))
        dfin_r.append(mkwaitlg('DR'))
        NL2E = -1.4426950408889634
        dfin_r.append(mk('s_mov_b32 %s, 0x%x' % (S(sCS), f2u(NL2E))))
        for e in range(0, 16, 2):
            d0, d1 = accDk + e, accDk + e + 1; t0, t1 = vT, vT + 1
            dfin_r += [mk('v_add_f32 %s, %s, %s' % (V(d0), V(d0), V(vDP + e))), mk('v_add_f32 %s, %s, %s' % (V(d1), V(d1), V(vDP + e + 1)))]
            dfin_r += [mk('v_mul_f32 %s, %s, %s' % (V(t0), S(sCS), V(d0))), mk('v_mul_f32 %s, %s, %s' % (V(t1), S(sCS), V(d1)))]
            dfin_r += [mk('v_exp_f32 %s, %s' % (V(t0), V(t0))), mk('v_exp_f32 %s, %s' % (V(t1), V(t1)))]
            dfin_r += [mk('s_nop 0')]
            dfin_r += [mk('v_add_f32 %s, 1.0, %s' % (V(t0), V(t0))), mk('v_add_f32 %s, 1.0, %s' % (V(t1), V(t1)))]
            dfin_r += [mk('v_rcp_f32 %s, %s' % (V(t0), V(t0))), mk('v_rcp_f32 %s, %s' % (V(t1), V(t1)))]
            dfin_r += [mk('s_nop 0')]
            dfin_r += [mk('v_mul_f32 %s, %s, %s' % (V(d0), V(d0), V(t0))), mk('v_mul_f32 %s, %s, %s' % (V(d1), V(d1), V(t1)))]
        per = (len(dfin_r) + 8) // 9
        for k in range(9):
            fill[63 + k] += dfin_r[k * per:(k + 1) * per]
        P.waitvm('B1'); I('s_barrier', c='B0,B1 landed')
        P.add(breads(0)); P.add(breads(1))
        for s in range(NS):
            kind = st[s][0]
            ak, as_ = (accSk, accSs) if kind == 'S' else (accDk, accDs)
            first = (s == 0 or s == s_first)
            fr = aBF + 8 * (s % 3); ar = aAR + 4 * (s % 16)
            P.waitvm('A%d' % s)
            P.waitlg('BK%d' % s)
            I('v_mfma_f32_32x32x16_bf16 %s, %s, %s, %s' % (V(ak, 16), A_(fr, 4), A_(ar, 4), '0' if first else V(ak, 16)))
            P.waitlg('BS%d' % s)
            I('v_mfma_f32_32x32x16_bf16 %s, %s, %s, %s' % (V(as_, 16), A_(fr + 4, 4), A_(ar, 4), '0' if first else V(as_, 16)))
            if (s + 2) % 8 == 0 and s + 2 < NS:
                m = (s + 2) // 8
                I('s_waitcnt lgkmcnt(0)')
                P.waitvm('B%d' % (2 * m + 1)); I('s_barrier')
                if s + 2 < NS: P.add(breads(s + 2))
                for s2 in (2 * m + 8, 2 * m + 9):
                    if s2 < 18: P.add(self.b_stage_dma(s2))
            elif s + 2 < NS:
                P.add(breads(s + 2))
            P.add(pre[s])
            if s + PD < NS: P.add(aload(s + PD))
            P.add(fill[s])
            if s in (15, 31, 47, 55, 63): self.stamp(P, 15 + [15, 31, 47, 55, 63].index(s))
        self.stamp(P, 20)
        I('s_nop 7')
        I('v_add_u32 %s, 0x%x, %s' % (V(vXW), XS - XD, V(vXW)))
        I('v_add_u32 %s, 0x%x, %s' % (V(vXRd), XS - XD, V(vXRd)))
        I('s_nop 1')
        for n in range(4):
            I('ds_write_b128 %s, %s offset:%d' % (V(vXW), V(accSs + 4 * n, 4), n * 1024))
        I('v_and_b32 %s, 31, %s' % (V(vT), V(vLane))); I('v_lshlrev_b32 %s, 1, %s' % (V(vT), V(vT)))
        I('v_add_u32 %s, %s, %s' % (V(vT), S(sP), V(vT)))
        I('v_mul_u32_u24 %s, 144, %s' % (V(vT), V(vT)))
        I('v_lshrrev_b32 %s, 5, %s' % (V(vT + 1), V(vLane)))
        I('v_lshl_add_u32 %s, %s, 3, %s' % (V(vT), V(vT + 1), V(vT)))
        I('s_lshl_b32 %s, %s, 6' % (S(sT0), S(sKH)))
        I('v_add_u32 %s, %s, %s' % (V(vYW), S(sT0), V(vT)))
        I('v_lshrrev_b32 %s, 3, %s' % (V(vT), V(vLane)))
        I('s_lshl_b32 %s, %s, 4' % (S(sT0), S(sWv)))
        I('v_add_u32 %s, %s, %s' % (V(vT), S(sT0), V(vT)))
        I('v_mul_u32_u24 %s, 144, %s' % (V(vT), V(vT)))
        I('v_and_b32 %s, 7, %s' % (V(vT + 1), V(vLane)))
        I('v_lshl_add_u32 %s, %s, 4, %s' % (V(vYR), V(vT + 1), V(vT)))
        I('s_waitcnt lgkmcnt(0)')
        I('s_barrier')
        for n in range(4):
            I('ds_read_b128 %s, %s offset:%d' % (V(vDP + 4 * n, 4), V(vXRd), n * 1024), tag='SR%d' % n)
        for n in range(4):
            P.waitlg('SR%d' % n)
            for k in range(4):
                e = 4 * n + k
                I('v_add_f32 %s, %s, %s' % (V(accSk + e), V(accSk + e), V(vDP + e)))
            for k in range(4):
                e = 4 * n + k
                I('v_mul_f32 %s, %s, %s' % (V(accSk + e), V(accSk + e), V(accDk + e)))
            I('v_cvt_pk_bf16_f32 %s, %s, %s' % (V(vYP + 2 * n), V(accSk + 4 * n), V(accSk + 4 * n + 1)))
            I('v_cvt_pk_bf16_f32 %s, %s, %s' % (V(vYP + 2 * n + 1), V(accSk + 4 * n + 2), V(accSk + 4 * n + 3)))
            I('ds_write_b64 %s, %s offset:%d' % (V(vYW), V(vYP + 2 * n, 2), YT + n * 16))
        I('s_waitcnt lgkmcnt(0)')
        I('s_barrier')
        I('ds_read_b128 %s, %s offset:%d' % (V(vDP, 4), V(vYR), YT), tag='Y0')
        I('ds_read_b128 %s, %s offset:%d' % (V(vDP + 4, 4), V(vYR), YT + 8 * 144), tag='Y1')
        P.waitvm('XR')
        for n in range(2):
            P.waitlg('Y%d' % n)
            for k in range(4):
                y = vDP + 4 * n + k; x = vXR + 4 * n + k
                t0, t1, t2, t3 = vT, vT + 1, vT + 2, vT + 3
                I('v_lshlrev_b32 %s, 16, %s' % (V(t0), V(y))); I('v_and_b32 %s, 0xffff0000, %s' % (V(t1), V(y)))
                I('v_lshlrev_b32 %s, 16, %s' % (V(t2), V(x))); I('v_and_b32 %s, 0xffff0000, %s' % (V(t3), V(x)))
                I('v_add_f32 %s, %s, %s' % (V(t0), V(t0), V(t2))); I('v_add_f32 %s, %s, %s' % (V(t1), V(t1), V(t3)))
                I('v_cvt_pk_bf16_f32 %s, %s, %s' % (V(x), V(t0), V(t1)))
            I('buffer_store_dwordx4 %s, %s, %s, %s offen' % (V(vXR + 4 * n, 4), V(vXo2), S(sOUT, 4), S(sXres if n == 0 else sXres2)))
        self.stamp(P, 21)
        I('s_endpgm')

    def build(self):
        common = Prog(); self.prologue(common)
        common.I('s_cmp_eq_u32 %s, 0' % S(sIsA)); common.I('s_cbranch_scc1 L_typeB')
        pa = Prog(); self.phase1(pa, True); self.phase2(pa, True)
        pb = Prog(); pb.L('L_typeB'); self.phase1(pb, False); self.phase2(pb, False)
        for nm, path in (('A', pa), ('B', pb)):
            seq = [i for i in common.ins + path.ins if not getattr(i, 'optional', False)]
            resolve_waits(seq)
        errs = []
        for nm, path in (('A', pa), ('B', pb)):
            errs += check_path(common.ins + path.ins, nm)
        tail = Prog()
        tail.add(self.slow)
        tail.L('L_end'); tail.I('s_endpgm'); tail.L('L_codeend')
        allins = common.ins + pa.ins + pb.ins + tail.ins
        return allins, errs

vZero = 254; vNonce = 253; vOffD = 252; vTRk = 251; vTRs = 250; vTRkc = 249; vTRsc = 248
vXo2 = 247; vXW = 246; vXRd = 245; vYW = 244; vYR = 243; vHi16 = 242
vRV = vP
vXR = 232
vDP = 216
vYP = 208
vSO, vSP = 96, 112
vCM = 128
vMM = 148
vBO = 158
vBP = 166
vOA = 170
vOP = 186
vAT = 20
sCS, sOst, sTp, sSoA, sXres, sXres2 = 6, 7, 8, 9, 4, 5
sRTT = sT

HEADER_COMMENT = open(os.path.join(os.path.dirname(os.path.abspath(__file__)), 'header.txt')).read() if os.path.exists(os.path.join(os.path.dirname(os.path.abspath(__file__)), 'header.txt')) else ''

def kernel_text(opt):
    g = Gen(opt)
    ins, errs = g.build()
    for e in errs[:40]: print('HAZARD', e)
    if errs: print('%d hazards' % len(errs))
    kn = NAME + '_kernel'
    header = '.amdgcn_target "amdgcn-amd-amdhsa--gfx950"\n.text\n.globl %s\n.p2align 8\n.type %s,@function\n%s:\n' % (kn, kn, kn)
    footer = ('.section .rodata,"a"\n.p2align 6\n.amdhsa_kernel %s\n  .amdhsa_next_free_vgpr 512\n  .amdhsa_next_free_sgpr 102\n'
              '  .amdhsa_accum_offset 256\n  .amdhsa_group_segment_fixed_size 0\n  .amdhsa_kernarg_size 80\n  .amdhsa_user_sgpr_count 2\n'
              '  .amdhsa_user_sgpr_kernarg_segment_ptr 1\n  .amdhsa_system_sgpr_workgroup_id_x 1\n.end_amdhsa_kernel\n') % kn
    ins, mis, nops = align_pass(ins, header, footer)
    print('instructions: %d, bytes: %d, misaligned 8B: %d, align nops: %d' % (sum(1 for i in ins if i.kind not in ('label', 'dir')), sum(i.size or 0 for i in ins if i.kind not in ('label', 'dir')), mis, nops))
    top = HEADER_COMMENT + '; @launch grid=(256,1,1) block=(256,1,1) lds=163840\n'
    return top + header + '\n'.join(i.render() for i in ins) + '\n' + footer, errs

if __name__ == '__main__':
    import argparse
    ap = argparse.ArgumentParser()
    ap.add_argument('-o', default='cdna_kernels/%s.s' % NAME)
    ap.add_argument('--stamps', action='store_true')
    ap.add_argument('--stop', default=None)
    ap.add_argument('--pd', type=int, default=14)
    a = ap.parse_args()
    o = Opt(); o.stamps = a.stamps; o.stop_after = a.stop; o.PD = a.pd
    txt, errs = kernel_text(o)
    open(a.o, 'w').write(txt)
    print('wrote', a.o)
```
